```python
import torch

def _softmax(x, axis=-1):
    return torch.softmax(x, dim=axis)
def _gelu(x):
    return torch.nn.functional.gelu(x, approximate="tanh")
def _silu(x):
    return torch.nn.functional.silu(x)
def _sigmoid(x):
    return torch.sigmoid(x)
def _layernorm(x, axis=-1, eps=1e-5):
    m = x.mean(dim=axis, keepdim=True)
    v = x.var(dim=axis, keepdim=True, unbiased=False)
    return (x - m) / torch.sqrt(v + eps)
def _scatter_add(tgt, idx, src, axis=0):
    return tgt.clone().index_add_(axis, idx, src)
def _segment_sum(src, seg, n):
    out = torch.zeros((n,) + src.shape[1:], dtype=src.dtype)
    return out.index_add_(0, seg, src)
def _pad(x, pw):
    flat = tuple(v for pair in reversed(pw) for v in pair)
    return torch.nn.functional.pad(x, flat)

kernel_name = 'recurrent_scan__sliding_local_dilated__glu_gated_reglu__prompt'

def setup_inputs():

    _w = (lambda a: (lambda t: t.to(torch.bfloat16) if t.is_floating_point() else t)(torch.as_tensor(a)))
    def _A_setup():
        B, S, D = 1, 2048, 640
        return {
            "x": _w((lambda *s: torch.randn(*s, dtype=torch.bfloat16) * 0.05)(B, S, D)),
            "wqkv": _w((lambda *s: torch.randn(*s, dtype=torch.bfloat16) * 0.2)(D, 3 * D)),
            "wo": _w((lambda *s: torch.randn(*s, dtype=torch.bfloat16) * 0.2)(D, D)),
        }
    _A_in = _A_setup()

    def _B_setup():
        B, S, D, F = 1, 2048, 640, 1536
        return {
            "x": _w((lambda *s: torch.randn(*s, dtype=torch.bfloat16) * 0.05)(B, S, D)),
            "W_gate": _w((lambda *s: torch.randn(*s, dtype=torch.bfloat16) * 0.1)(D, F) * (2.0 / D) ** 0.5),
            "W_up": _w((lambda *s: torch.randn(*s, dtype=torch.bfloat16) * 0.1)(D, F) * (2.0 / D) ** 0.5),
            "W_down": _w((lambda *s: torch.randn(*s, dtype=torch.bfloat16) * 0.1)(F, D) * (1.0 / F) ** 0.5),
        }
    _B_in = _B_setup()

    return {
        "A_x": _A_in["x"],
        "A_wqkv": _A_in["wqkv"],
        "A_wo": _A_in["wo"],
        "B_x": _B_in["x"],
        "B_W_gate": _B_in["W_gate"],
        "B_W_up": _B_in["W_up"],
        "B_W_down": _B_in["W_down"],
    }

def reference(A_x, A_wqkv, A_wo, B_x, B_W_gate, B_W_up, B_W_down):
    def _A_ref(x, wqkv, wo):
        B, S, D = x.shape
        H = 32; Dh = D // H
        W, dil = 8, 2
        qkv = (lambda x, *d: x.permute(*d))((x @ wqkv).reshape(B, S, 3, H, Dh), 2, 0, 3, 1, 4)
        q, k, v = qkv[0], qkv[1], qkv[2]
        scale = Dh ** -0.5
        pos = torch.arange(S)
        off = torch.arange(W) * dil
        idx = pos[:, None] - off[None, :]
        mask = idx >= 0
        idx_c = torch.where(mask, idx, 0).reshape(-1)
        kg = k[:, :, idx_c, :].reshape(B, H, S, W, Dh)
        vg = v[:, :, idx_c, :].reshape(B, H, S, W, Dh)
        logits = torch.einsum("bhsd,bhswd->bhsw", q, kg) * scale
        logits = torch.where(mask[None, None, :, :], logits, -1e9)
        attn = _softmax(logits, axis=-1)
        o = torch.einsum("bhsw,bhswd->bhsd", attn, vg)
        return (lambda x, *d: x.permute(*d))(o, 0, 2, 1, 3).reshape(B, S, D) @ wo

    def _B_ref(x, W_gate, W_up, W_down):
        gate = torch.einsum("bsd,df->bsf", x, W_gate)
        up = torch.einsum("bsd,df->bsf", x, W_up)
        gate = gate * (lambda x, dt: x.to(dt))(gate > 0, gate.dtype)
        h = gate * up
        return torch.einsum("bsf,fd->bsd", h, W_down)

    x = A_x
    xn = _layernorm(x, axis=-1)
    s = _A_ref(xn, A_wqkv, A_wo)
    g = _silu(_B_ref(xn, B_W_gate, B_W_up, B_W_down))
    return x + s * g
```

```python
NAME = "recurrent_scan__sliding_local_dilated__glu_gated_reglu__prompt"
HEADER = open("cdna_kernels/" + NAME + ".s.ref").read().split("; Override launch")[0]

class Asm:
    def __init__(self):
        self.lines = []
    def __call__(self, s):
        for l in s.strip("\n").split("\n"):
            self.lines.append("    " + l.strip() if not l.strip().endswith(":") else l.strip())
    def label(self, s):
        self.lines.append(s + ":")
    def text(self):
        return "\n".join(self.lines) + "\n"

def kernel_block(name, body, vgpr, sgpr, accum):
    return (f".globl {name}\n.p2align 8\n.type {name},@function\n{name}:\n" + body)

def descriptor(name, vgpr, sgpr, accum):
    return f""".p2align 6
.amdhsa_kernel {name}
  .amdhsa_next_free_vgpr {vgpr}
  .amdhsa_next_free_sgpr {sgpr}
  .amdhsa_accum_offset {accum}
  .amdhsa_group_segment_fixed_size 0
  .amdhsa_kernarg_size 80
  .amdhsa_user_sgpr_count 2
  .amdhsa_user_sgpr_kernarg_segment_ptr 1
  .amdhsa_system_sgpr_workgroup_id_x 1
.end_amdhsa_kernel
"""

def make_file(kernels):
    out = HEADER
    for k in kernels:
        out += f"; @launch kernel={k['name']} grid=({k['grid']},1,1) block=({k['block']},1,1) lds={k['lds']}\n"
    out += '.amdgcn_target "amdgcn-amd-amdhsa--gfx950"\n.text\n'
    seen = set()
    for k in kernels:
        if k['name'] in seen: continue
        seen.add(k['name'])
        out += kernel_block(k['name'], k['body'], k['vgpr'], k['sgpr'], k['accum'])
    out += '.section .rodata,"a"\n'
    seen = set()
    for k in kernels:
        if k['name'] in seen: continue
        seen.add(k['name'])
        out += descriptor(k['name'], k['vgpr'], k['sgpr'], k['accum'])
    return out

def interleave(main, fillers):
    out = []
    n = len(main); m = len(fillers); j = 0
    for i, x in enumerate(main):
        out.append(x)
        tgt = (i + 1) * m // n
        while j < tgt:
            out.append(fillers[j]); j += 1
    return out
```

```python
import sys
from asmlib import *

ACT_RG = 68 * 4096
ACT_OFF = 0
ACT_BYTES = 32 * ACT_RG
WP_OFF = ACT_BYTES
WP_CG = 68 * 5120
WP_BYTES = 8 * WP_CG
WS_USED = WP_OFF + WP_BYTES
STAMP_OFF = 16 << 20

def srd(a, d, lo, hi, nbytes):
    a(f"s_mov_b32 s{d}, s{lo}\ns_and_b32 s{d+1}, s{hi}, 0xffff\ns_mov_b32 s{d+2}, {nbytes}\ns_mov_b32 s{d+3}, 0x00020000")

def stamp(a, idx, kidx, sreg=90, diag=False):
    if diag == "cyc":
        a(f"s_memtime s[{sreg+2*idx}:{sreg+2*idx+1}]")
    elif diag:
        a(f"s_memrealtime s[{sreg+2*idx}:{sreg+2*idx+1}]")

def stamp_flush(a, n, kidx, srd_ws, wave_sgpr, vtmp, sreg=90, diag=False):
    if not diag: return
    a("s_waitcnt lgkmcnt(0)")
    a(f"s_lshl_b32 s88, s2, 3\ns_add_u32 s88, s88, s{wave_sgpr}\ns_lshl_b32 s88, s88, 5\ns_add_u32 s88, s88, {STAMP_OFF + kidx*65536}")
    a(f"v_mov_b32 v{vtmp+1}, 0")
    for i in range(n):
        a(f"v_mov_b32 v{vtmp}, s{sreg+2*i}")
        a(f"buffer_store_dword v{vtmp}, v{vtmp+1}, s[{srd_ws}:{srd_ws+3}], s88 offen offset:{4*i}")
        a("s_nop 1")

def gen_k0(diag=False):
    a = Asm()
    a("""
    s_cmp_ge_u32 s2, 136
    s_cbranch_scc1 L0_done
    s_load_dwordx2 s[4:5], s[0:1], 16
    s_load_dwordx2 s[6:7], s[0:1], 48
    s_load_dwordx2 s[8:9], s[0:1], 72
    v_lshrrev_b32 v1, 6, v0
    v_and_b32 v2, 63, v0
    s_nop 0
    v_readfirstlane_b32 s20, v1
    s_lshl_b32 s21, s2, 2
    s_add_u32 s21, s21, s20          ; unit 0..543
    s_and_b32 s22, s21, 7            ; cg
    s_lshr_b32 s23, s21, 3           ; s2 (0..67)
    s_waitcnt lgkmcnt(0)
    """)
    a("""
    s_cmp_lt_u32 s23, 20
    s_cselect_b32 s12, s4, s6
    s_cselect_b32 s13, s5, s7
    s_mov_b32 s14, 1966080
    s_cselect_b32 s14, 819200, s14
    s_cselect_b32 s24, 0, 20
    s_and_b32 s13, s13, 0xffff
    s_mov_b32 s15, 0x00020000
    s_sub_u32 s24, s23, s24
    s_mul_i32 s25, s24, 40960        ; 32 rows * 1280
    s_mul_i32 s26, s22, 160
    s_add_u32 s25, s25, s26          ; soffset
    """)
    srd(a, 16, 8, 9, WS_USED)
    a("s_mul_i32 s27, s20, 5120")
    for j in range(5):
        a(f"""
        v_add_u32 v3, {64*j}, v2
        v_mul_u32_u24 v4, 6554, v3
        v_lshrrev_b32 v4, 16, v4         ; row = q/10
        v_mul_u32_u24 v5, 10, v4
        v_sub_u32 v5, v3, v5             ; c
        v_mul_u32_u24 v4, 1280, v4
        v_lshl_add_u32 v4, v5, 4, v4
        s_add_u32 m0, s27, {1024*j}
        s_nop 0
        buffer_load_dwordx4 v4, s[12:15], s25 offen lds
        """)
    a("""
    v_lshrrev_b32 v3, 4, v2          ; cc
    v_bfe_u32 v4, v2, 2, 2           ; r
    v_and_b32 v5, 3, v2              ; cq
    ; o-part row = 8cc + r (second +4) ; h-part row = 16(cc>>1) + 4(cc&1) + r (second +8)
    v_lshl_add_u32 v6, v3, 3, v4
    v_lshrrev_b32 v7, 1, v3
    v_lshlrev_b32 v7, 4, v7
    v_and_b32 v8, 1, v3
    v_lshl_add_u32 v7, v8, 2, v7
    v_add_u32 v7, v7, v4
    s_cmp_lt_u32 s23, 20
    s_cselect_b64 vcc, -1, 0
    s_mov_b32 s28, 1280
    s_cselect_b32 s28, 640, s28
    s_nop 1
    v_cndmask_b32 v6, v7, v6, vcc
    v_mul_u32_u24 v6, 160, v6
    v_lshl_add_u32 v6, v5, 3, v6
    v_add_u32 v6, s27, v6
    v_add_u32 v7, s28, v6
    v_lshlrev_b32 v9, 4, v2
    s_mul_i32 s29, s22, %d
    s_mul_i32 s30, s23, 5120
    s_add_u32 s29, s29, s30
    s_add_u32 s29, s29, %d
    s_add_u32 s30, s29, 4096
    s_waitcnt vmcnt(0)
    """ % (WP_CG, WP_OFF))
    for j in range(5):
        a(f"ds_read_b64_tr_b16 v[{12+4*j}:{13+4*j}], v6 offset:{32*j}")
        a(f"ds_read_b64_tr_b16 v[{14+4*j}:{15+4*j}], v7 offset:{32*j}")
    a("s_waitcnt lgkmcnt(0)")
    for j in range(4):
        a(f"buffer_store_dwordx4 v[{12+4*j}:{15+4*j}], v9, s[16:19], s29 offen offset:{1024*j}")
    a(f"buffer_store_dwordx4 v[28:31], v9, s[16:19], s30 offen")
    a("s_waitcnt vmcnt(0)")
    a.label("L0_done")
    a("s_endpgm")
    return dict(name="k0_kernel", body=a.text(), vgpr=32, sgpr=40, accum=32, grid=136, block=256, lds=20480)

def gen_k2(diag=False, D=6):
    a = Asm()
    stamp(a, 0, 2, diag=diag)
    a("""
    s_cmp_ge_u32 s2, 256
    s_cbranch_scc1 L2_done
    s_load_dwordx2 s[4:5], s[0:1], 0
    s_load_dwordx2 s[6:7], s[0:1], 56
    s_load_dwordx2 s[8:9], s[0:1], 72
    v_lshrrev_b32 v1, 6, v0
    v_and_b32 v2, 63, v0
    s_and_b32 s21, s2, 7             ; xcd
    v_readfirstlane_b32 s20, v1      ; wave
    s_lshr_b32 s22, s2, 3            ; idx
    s_lshr_b32 s23, s21, 1
    s_lshl_b32 s23, s23, 3
    s_and_b32 s24, s22, 7
    s_add_u32 s23, s23, s24          ; rg
    s_and_b32 s24, s21, 1
    s_lshl_b32 s24, s24, 2
    s_lshr_b32 s25, s22, 3
    s_add_u32 s24, s24, s25          ; cg
    ; first k-step: w==0 -> 0 else 4+16w
    s_lshl_b32 s26, s20, 4
    s_add_u32 s26, s26, 4
    s_cmp_eq_u32 s20, 0
    s_cselect_b32 s26, 0, s26
    s_mul_i32 s27, s23, %d
    s_lshl_b32 s28, s26, 12
    s_add_u32 s27, s27, s28          ; act soffset
    s_mul_i32 s28, s24, %d
    s_mul_i32 s29, s26, 5120
    s_add_u32 s28, s28, s29
    s_add_u32 s28, s28, %d           ; wp soffset
    v_lshlrev_b32 v3, 4, v2          ; lane*16
    v_add_u32 v4, 1024, v3
    ; x/out offsets: token = rg*64 + w*16 + (l&15); col = cg*80 + 16j + 4(l>>4)
    v_and_b32 v5, 15, v2
    v_mul_u32_u24 v5, 1280, v5
    v_lshrrev_b32 v6, 4, v2
    v_lshl_add_u32 v5, v6, 3, v5
    s_lshl_b32 s30, s23, 6
    s_lshl_b32 s31, s20, 4
    s_add_u32 s30, s30, s31
    s_mul_i32 s30, s30, 1280
    s_mul_i32 s31, s24, 160
    s_add_u32 s30, s30, s31          ; x/out soffset
    s_waitcnt lgkmcnt(0)
    """ % (ACT_RG, WP_CG, WP_OFF))
    srd(a, 12, 8, 9, WS_USED if not diag else 0x10000000)
    srd(a, 16, 4, 5, 2621440)
    srd(a, 32, 6, 7, 2621440)
    ACC = 16
    XR = 96
    def loads(buf):
        base = buf * 36
        out = []
        for tb in range(4):
            out.append(f"buffer_load_dwordx4 a[{base+4*tb}:{base+4*tb+3}], v3, s[12:15], s27 offen offset:{1024*tb}")
        out.append(f"buffer_load_dwordx4 a[{base+16}:{base+19}], v3, s[12:15], s28 offen")
        for j in range(1, 5):
            out.append(f"buffer_load_dwordx4 a[{base+16+4*j}:{base+19+4*j}], v4, s[12:15], s28 offen offset:{1024*(j-1)}")
        out.append("s_add_u32 s27, s27, 4096\ns_add_u32 s28, s28, 5120")
        return out
    def mfmas(buf, first):
        base = buf * 36
        out = []
        for tb in range(4):
            for j in range(5):
                r = ACC + (tb * 5 + j) * 4
                c = "0" if first else f"v[{r}:{r+3}]"
                out.append(f"v_mfma_f32_16x16x32_bf16 v[{r}:{r+3}], a[{base+16+4*j}:{base+19+4*j}], a[{base+4*tb}:{base+4*tb+3}], {c}")
        return out
    for i in range(D):
        for x in loads(i): a(x)
    for j in range(5):
        a(f"buffer_load_dwordx2 v[{XR+2*j}:{XR+2*j+1}], v5, s[16:19], s30 offen offset:{32*j}")
    a("s_cmp_eq_u32 s20, 0\ns_cbranch_scc1 L2_w0")
    def body(n):
        for i in range(n):
            issued_after = min(n, i + D) - (i + 1)
            cnt = 9 * issued_after + (5 if i < D else 0)
            a(f"s_waitcnt vmcnt({cnt})")
            if i == 0: stamp(a, 1, 2, diag=diag)
            for x in mfmas(i % D, i == 0): a(x)
            if i + D < n:
                for x in loads(i % D): a(x)
    body(16)
    a("s_branch L2_red")
    a.label("L2_w0")
    body(20)
    a.label("L2_red")
    stamp(a, 2, 2, diag=diag)
    a("""
    s_mul_i32 s36, s20, 20480
    v_add_u32 v6, s36, v3
    s_mul_i32 s37, s20, 5120
    v_add_u32 v7, s37, v3
    v_add_u32 v8, 61440, v7
    s_nop 7
    """)
    for tb in range(4):
        a(f"s_cmp_eq_u32 s20, {tb}\ns_cbranch_scc1 L2_skipw{tb}")
        for j in range(5):
            r = ACC + (tb * 5 + j) * 4
            a(f"ds_write_b128 v6, v[{r}:{r+3}] offset:{(tb*5+j)*1024}")
        a.label(f"L2_skipw{tb}")
    OWN = 112
    for tb in range(4):
        a(f"s_cmp_lg_u32 s20, {tb}\ns_cbranch_scc1 L2_skipm{tb}")
        for q in range(20):
            a(f"v_mov_b32 v{OWN+q}, v{ACC+tb*20+q}")
        a.label(f"L2_skipm{tb}")
    a("s_waitcnt lgkmcnt(0)\ns_barrier")
    SRC = 16
    for s in range(4):
        a(f"s_cmp_eq_u32 s20, {s}\ns_cbranch_scc1 L2_own{s}")
        for j in range(5):
            r = SRC + s * 20 + 4 * j
            off = s * 20480 + j * 1024
            if s == 3: a(f"ds_read_b128 v[{r}:{r+3}], v8 offset:{j*1024}")
            else: a(f"ds_read_b128 v[{r}:{r+3}], v7 offset:{off}")
        a(f"s_branch L2_nxt{s}")
        a.label(f"L2_own{s}")
        for q in range(20):
            a(f"v_mov_b32 v{SRC+s*20+q}, v{OWN+q}")
        a.label(f"L2_nxt{s}")
    a("s_waitcnt lgkmcnt(0) vmcnt(0)")
    a("s_mov_b32 s38, 0xbfb8aa3b")
    T = 112
    for q in range(20):
        a(f"v_add_f32 v{36+q}, v{36+q}, v{56+q}")
    for q in range(20):
        a(f"v_add_f32 v{36+q}, v{36+q}, v{76+q}")
    for q in range(20):
        a(f"v_mul_f32 v{56+q}, s38, v{36+q}")
    for q in range(20):
        a(f"v_exp_f32 v{56+q}, v{56+q}")
    for q in range(20):
        a(f"v_add_f32 v{56+q}, 1.0, v{56+q}")
    for q in range(20):
        a(f"v_rcp_f32 v{56+q}, v{56+q}")
    for q in range(20):
        a(f"v_mul_f32 v{36+q}, v{36+q}, v{16+q}")
    for q in range(10):
        a(f"v_lshlrev_b32 v{76+2*q}, 16, v{XR+q}")
        a(f"v_and_b32 v{77+2*q}, 0xffff0000, v{XR+q}")
    for q in range(20):
        a(f"v_fmac_f32 v{76+q}, v{36+q}, v{56+q}")
    for q in range(10):
        a(f"v_cvt_pk_bf16_f32 v{T+q}, v{76+2*q}, v{77+2*q}")
    for j in range(5):
        a(f"buffer_store_dwordx2 v[{T+2*j}:{T+2*j+1}], v5, s[32:35], s30 offen offset:{32*j}")
    stamp(a, 3, 2, diag=diag)
    stamp_flush(a, 4, 2, 12, 20, 8, diag=diag)
    a.label("L2_done")
    a("s_endpgm")
    return dict(name="k2_kernel", body=a.text(), vgpr=136 + 36 * D, sgpr=100, accum=136, grid=256, block=256, lds=81920)

if __name__ == "__main__":
    diag = "--diag" in sys.argv
    open("k02.s", "w").write(make_file([gen_k0(diag), gen_k2(diag)]))
```

```python
import sys
from asmlib import *
from gen import srd, stamp, stamp_flush, ACT_RG, WS_USED, WP_OFF, WP_CG

EXP = set()
class VM:
    def __init__(self, a): self.a = a; self.q = []
    def issue(self, tag): self.q.append(tag)
    def count_for(self, tag):
        idx = max(i for i, t in enumerate(self.q) if t == tag)
        n = len(self.q) - 1 - idx
        self.q = self.q[idx + 1:]
        return n
    def wait(self, tag):
        n = self.count_for(tag)
        assert n <= 63
        return f"s_waitcnt vmcnt({n})"

def place(mf, fill):
    out = list(fill.get(-1, []))
    for g, m in enumerate(mf):
        out.append(m)
        out += fill.get(g, [])
    return out

def spread(fill, ops, g0, g1):
    n = g1 - g0 + 1
    for i, o in enumerate(ops):
        g = g0 + i * n // len(ops)
        fill.setdefault(g, []).append(o)

S_X, S_W0, S_W1, S_WS = 8, 12, 16, 20
S_WAVE, S_RB, S_CG, S_RHO = 24, 25, 26, 27
S_XOFF, S_WOFF, S_WLDS, S_T0, S_T1, S_T2, S_ROW = 28, 29, 30, 31, 32, 33, 34
S_WEND = 35
S_ST = 36
S_MASK = 48

def gen_type(a, T, diag):
    F = T == 'F'
    NTB = 4 if F else 5
    NB = 3 if F else 2
    NM = NTB * NB
    XSLOT = NTB * 4096
    WBASE = 2 * XSLOT
    WSLOT = 24576 if F else 16384
    NSLOT = 5 if F else 6
    LOSLOTS = 3 if F else 4
    NDMA = 6 if F else 4
    WPITCH = 3072 if F else 3840
    RAWN = 16 if F else 18
    ACC = 256 - NM * 16
    LAND = 256 - 10 * RAWN
    FR = 10 * RAWN - RAWN
    FSET = (NTB + NB) * 4
    V_LANE = 1
    V_XRD = 2
    V_WRD = 6
    V_XWR = 12
    V_DMA = 15
    V_XLD = 21
    V_R = 26
    V_MR = 31
    V_T = 36
    V_ONES = 60
    V_ST = 61
    V_A0 = 62; V_A1 = 63
    L = f"L1{T}"
    vm = VM(a)
    def acc(tb, b): return ACC + (tb * NB + b) * 16
    def xfrag(st, tb): return FR + st * FSET + tb * 4
    def wfrag(st, b): return FR + st * FSET + NTB * 4 + b * 4

    t0, t1, t2, t3, t4 = V_T, V_T + 1, V_T + 2, V_T + 3, V_T + 4
    a(f"""
    v_lshrrev_b32 v{t0}, 3, v{V_LANE}
    s_lshl_b32 s{S_T0}, s{S_WAVE}, 5
    v_add_u32 v{t0}, s{S_T0}, v{t0}
    v_mul_u32_u24 v{t1}, 1280, v{t0}
    v_and_b32 v{t2}, 7, v{V_LANE}
    v_lshl_add_u32 v{V_XLD}, v{t2}, 4, v{t1}
    v_add_u32 v{V_XLD+1}, 10240, v{V_XLD}
    v_add_u32 v{V_XLD+2}, 20480, v{V_XLD}
    v_add_u32 v{V_XLD+3}, 30720, v{V_XLD}
    """)
    if not F:
        a(f"""
        v_lshrrev_b32 v{t3}, 4, v{V_LANE}
        s_lshl_b32 s{S_T0}, s{S_WAVE}, 2
        v_add_u32 v{t3}, s{S_T0}, v{t3}
        v_mul_u32_u24 v{t3}, 1280, v{t3}
        v_and_b32 v{t4}, 15, v{V_LANE}
        v_lshl_add_u32 v{t3}, v{t4}, 3, v{t3}
        s_mov_b32 s{S_T1}, 0x7ff00000
        s_cmp_eq_u32 s{S_RB}, 0
        s_cselect_b32 s{S_T1}, s{S_T1}, 0
        v_add_u32 v{V_XLD+4}, s{S_T1}, v{t3}
        """)
    a(f"""
    s_mul_i32 s{S_ROW}, s{S_RB}, {128*1280}
    s_lshl_b32 s{S_XOFF}, s{S_RHO}, 7
    s_waitcnt lgkmcnt(0)
    """)
    srd(a, S_X, 64, 65, 2621440)
    def xload(s):
        out = [f"s_add_u32 s{S_T2}, s{S_ROW}, s{S_XOFF}"]
        base = LAND + s * RAWN
        for j in range(4):
            out.append(f"buffer_load_dwordx4 v[{base+4*j}:{base+4*j+3}], v{V_XLD+j}, s[{S_X}:{S_X+3}], s{S_T2} offen")
            vm.issue(f"X{s}")
        if not F:
            out.append(f"s_sub_u32 s{S_T2}, s{S_T2}, 20480\ns_max_i32 s{S_T2}, s{S_T2}, 0")
            out.append(f"buffer_load_dwordx2 v[{base+16}:{base+17}], v{V_XLD+4}, s[{S_X}:{S_X+3}], s{S_T2} offen")
            vm.issue(f"X{s}")
        out.append(f"s_add_u32 s{S_XOFF}, s{S_XOFF}, 128\ns_cmp_eq_u32 s{S_XOFF}, 1280\ns_cselect_b32 s{S_XOFF}, 0, s{S_XOFF}")
        return out
    for s in range(4):
        for x in xload(s): a(x)
    if F:
        srd(a, S_W0, 72, 73, 1966080); srd(a, S_W1, 74, 75, 1966080)
    else:
        srd(a, S_W0, 66, 67, 2457600)
    srd(a, S_WS, 82, 83, WS_USED if not diag else 0x10000000)
    a(f"""
    v_and_b32 v{t0}, 31, v{V_LANE}
    v_lshrrev_b32 v{t1}, 5, v{V_LANE}
    v_bfe_u32 v{t2}, v{V_LANE}, 1, 3
    v_xor_b32 v{t2}, v{t2}, v{t1}
    v_lshlrev_b32 v{t0}, 7, v{t0}
    """)
    for ks in range(4):
        a(f"v_xor_b32 v{t3}, {2*ks}, v{t2}\nv_lshl_add_u32 v{V_XRD+ks}, v{t3}, 4, v{t0}")
    a(f"""
    v_lshrrev_b32 v{t0}, 3, v{V_LANE}
    s_lshl_b32 s{S_T0}, s{S_WAVE}, 5
    s_add_u32 s{S_T0}, s{S_T0}, {0 if F else 32}
    v_add_u32 v{t0}, s{S_T0}, v{t0}
    v_lshlrev_b32 v{t0}, 7, v{t0}
    v_lshrrev_b32 v{t1}, 4, v{V_LANE}
    v_and_b32 v{t2}, 7, v{V_LANE}
    v_xor_b32 v{t2}, v{t2}, v{t1}
    v_lshl_add_u32 v{V_XWR}, v{t2}, 4, v{t0}
    v_xor_b32 v{t2}, 4, v{t2}
    v_lshl_add_u32 v{V_XWR+1}, v{t2}, 4, v{t0}
    v_add_u32 v{V_XWR+1}, 1024, v{V_XWR+1}
    """)
    if not F:
        a(f"""
        s_lshl_b32 s{S_T0}, s{S_WAVE}, 2
        s_add_u32 s{S_T0}, s{S_T0}, 16
        v_add_u32 v{t0}, s{S_T0}, v{t1}
        v_bfe_u32 v{t2}, v{t0}, 1, 3
        v_bfe_u32 v{t3}, v{V_LANE}, 1, 3
        v_xor_b32 v{t2}, v{t2}, v{t3}
        v_lshlrev_b32 v{t0}, 7, v{t0}
        v_lshl_add_u32 v{t0}, v{t2}, 4, v{t0}
        v_and_b32 v{t3}, 1, v{V_LANE}
        v_lshl_add_u32 v{V_XWR+2}, v{t3}, 3, v{t0}
        """)
    if F:
        for j in range(3):
            a(f"""
            v_add_u32 v{t0}, {64*j}, v{V_LANE}
            v_mul_u32_u24 v{t1}, 2731, v{t0}
            v_lshrrev_b32 v{t1}, 16, v{t1}
            v_mul_u32_u24 v{t2}, 24, v{t1}
            v_sub_u32 v{t2}, v{t0}, v{t2}
            v_and_b32 v{t3}, 2, v{t1}
            v_xor_b32 v{t2}, v{t2}, v{t3}
            s_lshl_b32 s{S_T0}, s{S_WAVE}, 3
            v_add_u32 v{t1}, s{S_T0}, v{t1}
            v_mul_u32_u24 v{t1}, 3072, v{t1}
            v_subrev_u32 v{t1}, {1024*j}, v{t1}
            v_lshl_add_u32 v{V_DMA+j}, v{t2}, 4, v{t1}
            v_xor_b32 v{t2}, 4, v{t2}
            v_lshl_add_u32 v{V_DMA+3+j}, v{t2}, 4, v{t1}
            """)
        a(f"""
        v_bfe_u32 v{t0}, v{V_LANE}, 4, 1          ; up
        v_lshrrev_b32 v{t1}, 5, v{V_LANE}         ; hi
        v_bfe_u32 v{t2}, v{V_LANE}, 2, 2          ; r
        v_lshl_add_u32 v{t1}, v{t1}, 3, v{t2}     ; 8hi + r
        v_mul_u32_u24 v{t1}, 384, v{t1}
        v_mul_u32_u24 v{t3}, 12288, v{t0}
        v_add_u32 v{t1}, v{t1}, v{t3}
        v_and_b32 v{t3}, 1, v{V_LANE}
        v_lshl_add_u32 v{t1}, v{t3}, 3, v{t1}
        v_add_u32 v{t1}, {WBASE}, v{t1}
        v_and_b32 v{t2}, 2, v{t2}                 ; h<<1
        v_lshlrev_b32 v{t0}, 2, v{t0}
        v_xor_b32 v{t2}, v{t2}, v{t0}
        v_bfe_u32 v{t3}, v{V_LANE}, 1, 1          ; cq>>1
        s_mul_i32 s{S_T0}, s{S_WAVE}, 6
        v_add_u32 v{t3}, s{S_T0}, v{t3}
        """)
        for b in range(3):
            a(f"""
            v_add_u32 v{t0}, {2*b}, v{t3}
            v_xor_b32 v{t0}, v{t0}, v{t2}
            v_lshl_add_u32 v{V_WRD+b}, v{t0}, 4, v{t1}
            v_add_u32 v{V_WRD+3+b}, {LOSLOTS*WSLOT}, v{V_WRD+b}
            """)
        a(f"s_mul_i32 s{S_WLDS}, s{S_WAVE}, 3072\ns_add_u32 s{S_WLDS}, s{S_WLDS}, {WBASE}")
        a(f"s_mul_i32 s{S_T0}, s{S_CG}, 384")
    else:
        for j in range(4):
            a(f"""
            v_lshrrev_b32 v{t0}, 5, v{V_LANE}
            v_add_u32 v{t0}, {2*j}, v{t0}             ; row
            v_and_b32 v{t1}, 3, v{t0}
            v_lshlrev_b32 v{t1}, 2, v{t1}
            v_and_b32 v{t2}, 31, v{V_LANE}
            v_xor_b32 v{t2}, v{t2}, v{t1}             ; c
            v_lshlrev_b32 v{t1}, 4, v{t2}             ; 16c
            v_add_u32 v{t3}, 1280, v{t1}              ; k section
            v_add_u32 v{t4}, {2560-160}, v{t1}        ; v section
            v_cmp_le_u32 vcc, 10, v{t2}
            s_nop 1
            v_cndmask_b32 v{t3}, v{t3}, v{t4}, vcc
            v_subrev_u32 v{t4}, 320, v{t1}            ; q section
            v_cmp_le_u32 vcc, 20, v{t2}
            s_nop 1
            v_cndmask_b32 v{t3}, v{t3}, v{t4}, vcc
            v_mov_b32 v{t4}, 0x7ff00000
            v_cmp_le_u32 vcc, 30, v{t2}
            s_nop 1
            v_cndmask_b32 v{t3}, v{t3}, v{t4}, vcc
            s_lshl_b32 s{S_T0}, s{S_WAVE}, 3
            v_add_u32 v{t0}, s{S_T0}, v{t0}
            v_mul_u32_u24 v{t0}, 3840, v{t0}
            v_subrev_u32 v{t0}, {1024*j}, v{t0}
            v_add_u32 v{V_DMA+j}, v{t0}, v{t3}
            """)
        a(f"""
        v_lshrrev_b32 v{t1}, 5, v{V_LANE}         ; hi
        v_bfe_u32 v{t2}, v{V_LANE}, 2, 2          ; r
        v_lshl_add_u32 v{t1}, v{t1}, 3, v{t2}
        v_lshlrev_b32 v{t1}, 9, v{t1}
        v_add_u32 v{t1}, {WBASE}, v{t1}
        v_lshlrev_b32 v{t2}, 6, v{t2}             ; r<<6
        s_mul_i32 s{S_T0}, s{S_WAVE}, 5
        """)
        for b in range(2):
            a(f"""
            v_bfe_u32 v{t0}, v{V_LANE}, 4, 1
            v_and_b32 v{t3}, 3, v{V_LANE}
            v_lshl_add_u32 v{t0}, v{t0}, 2, v{t3}
            v_add_u32 v{t0}, {8*b}, v{t0}
            v_min_u32 v{t0}, 14, v{t0}
            v_add_u32 v{t3}, s{S_T0}, v{t0}
            v_add_u32 v{t4}, 15, v{t3}
            v_cmp_le_u32 vcc, 5, v{t0}
            s_nop 1
            v_cndmask_b32 v{t3}, v{t3}, v{t4}, vcc
            v_add_u32 v{t4}, 15, v{t3}
            v_cmp_le_u32 vcc, 10, v{t0}
            s_nop 1
            v_cndmask_b32 v{t3}, v{t3}, v{t4}, vcc
            v_lshlrev_b32 v{t3}, 3, v{t3}
            v_xor_b32 v{t3}, v{t3}, v{t2}
            v_add_u32 v{V_WRD+b}, v{t3}, v{t1}
            v_add_u32 v{V_WRD+NB+b}, {LOSLOTS*WSLOT}, v{V_WRD+b}
            """)
        a(f"s_lshl_b32 s{S_WLDS}, s{S_WAVE}, 12\ns_add_u32 s{S_WLDS}, s{S_WLDS}, {WBASE}")
        a(f"s_mul_i32 s{S_T0}, s{S_CG}, 160")
    a(f"""
    s_mul_i32 s{S_WOFF}, s{S_RHO}, {64*WPITCH}
    s_add_u32 s{S_WOFF}, s{S_WOFF}, s{S_T0}
    s_add_u32 s{S_WEND}, s{S_T0}, {640*WPITCH}
    v_mov_b32 v{V_ONES}, 0x3f803f80
    """)
    NTOK = 4 if F else 5
    SUM, SQ = V_T, V_T + 5
    for j in range(NTOK): a(f"v_mov_b32 v{SUM+j}, 0\nv_mov_b32 v{SQ+j}, 0")

    def wdma(t):
        slot = t % NSLOT
        out = []
        if F:
            for m in range(2):
                out.append(f"s_add_u32 m0, s{S_WLDS}, {slot*WSLOT + m*12288}\ns_nop 0")
                for j in range(3):
                    out.append(f"buffer_load_dwordx4 v{V_DMA+3*m+j}, s[{S_W0+4*m}:{S_W0+4*m+3}], s{S_WOFF} offen offset:{1024*j} lds")
                    vm.issue(f"W{t}")
        else:
            out.append(f"s_add_u32 m0, s{S_WLDS}, {slot*WSLOT}\ns_nop 0")
            for j in range(4):
                out.append(f"buffer_load_dwordx4 v{V_DMA+j}, s[{S_W0}:{S_W0+3}], s{S_WOFF} offen offset:{1024*j} lds")
                vm.issue(f"W{t}")
        out.append(f"s_add_u32 s{S_WOFF}, s{S_WOFF}, {32*WPITCH}\ns_cmp_eq_u32 s{S_WOFF}, s{S_WEND}\ns_cselect_b32 s{S_T0}, {640*WPITCH}, 0\ns_sub_u32 s{S_WOFF}, s{S_WOFF}, s{S_T0}")
        return out

    wnext = 0
    for s in range(10):
        a(vm.wait(f"X{s}"))
        if s == 0: stamp(a, 1, 1, diag=diag)
        if s + 4 < 10:
            for x in xload(s + 4): a(x)
        else:
            for x in wdma(wnext): a(x)
            wnext += 1
        base = LAND + s * RAWN
        for q in range(RAWN):
            j = q // 4
            a(f"v_dot2c_f32_bf16 v{SUM+j}, v{base+q}, v{V_ONES}")
            a(f"v_dot2c_f32_bf16 v{SQ+j}, v{base+q}, v{base+q}")
            if s > 0: a(f"v_accvgpr_write_b32 a{(s-1)*RAWN+q}, v{base+q}")
    while wnext < NSLOT:
        for x in wdma(wnext): a(x)
        wnext += 1
    stamp(a, 2, 1, diag=diag)
    regs = [SUM + j for j in range(NTOK)] + [SQ + j for j in range(NTOK)]
    a("s_nop 2")
    for ctl in ("quad_perm:[1,0,3,2]", "quad_perm:[2,3,0,1]", "row_half_mirror"):
        for r in regs: a(f"v_add_f32_dpp v{r}, v{r}, v{r} {ctl} row_mask:0xf bank_mask:0xf")
    if not F:
        a("s_nop 1")
        for r in (SUM + 4, SQ + 4): a(f"v_add_f32_dpp v{r}, v{r}, v{r} row_mirror row_mask:0xf bank_mask:0xf")
    a(f"s_mov_b32 s{S_T0}, 0x3acccccd")
    a(f"v_mov_b32 v{V_T+10}, 0x3727c5ac")
    for j in range(NTOK): a(f"v_mul_f32 v{SUM+j}, s{S_T0}, v{SUM+j}")
    for j in range(NTOK): a(f"v_mul_f32 v{SQ+j}, s{S_T0}, v{SQ+j}")
    for j in range(NTOK): a(f"v_fma_f32 v{SQ+j}, -v{SUM+j}, v{SUM+j}, v{SQ+j}")
    for j in range(NTOK): a(f"v_max_f32 v{SQ+j}, 0, v{SQ+j}")
    for j in range(NTOK): a(f"v_add_f32 v{SQ+j}, v{V_T+10}, v{SQ+j}")
    for j in range(NTOK): a(f"v_rsq_f32 v{V_R+j}, v{SQ+j}")
    a("s_nop 0")
    for j in range(NTOK): a(f"v_mul_f32 v{V_MR+j}, -v{SUM+j}, v{V_R+j}")
    a(f"s_mov_b32 s{S_MASK}, 0xffff0000")

    def jit(s, j, tmp):
        n = 4 if j < 4 else 2
        out = []
        U, P = tmp, tmp + 8
        if s == 0:
            src = [LAND + 4 * j + q for q in range(n)]
        else:
            src = [P + q for q in range(n)]
            for q in range(n): out.append(f"v_accvgpr_read_b32 v{P+q}, a{(s-1)*RAWN+4*j+q}")
        for q in range(n):
            out.append(f"v_lshlrev_b32 v{U+2*q}, 16, v{src[q]}")
            out.append(f"v_and_b32 v{U+2*q+1}, s{S_MASK}, v{src[q]}")
        for q in range(2 * n): out.append(f"v_fma_f32 v{U+q}, v{U+q}, v{V_R+j}, v{V_MR+j}")
        for q in range(n): out.append(f"v_cvt_pk_bf16_f32 v{P+q}, v{U+2*q}, v{U+2*q+1}")
        xo = (s % 2) * XSLOT
        if j < 4: out.append(f"ds_write_b128 v{V_XWR+(j&1)}, v[{P}:{P+3}] offset:{xo + (j>>1)*2048}")
        else: out.append(f"ds_write_b64 v{V_XWR+2}, v[{P}:{P+1}] offset:{xo}")
        return out
    def reads(i):
        st = i % 2; s = i // 4; ks4 = i % 4; t = i // 2; ks = i % 2; slot = t % NSLOT
        out = []
        wr = []
        for b in range(NB):
            vr = V_WRD + b + (NB if slot >= LOSLOTS else 0)
            so = (slot - LOSLOTS if slot >= LOSLOTS else slot) * WSLOT
            rp = 384 if F else 512
            o = so + ks * 16 * rp
            w = wfrag(st, b)
            wr.append(f"ds_read_b64_tr_b16 a[{w}:{w+1}], v{vr} offset:{o}")
            wr.append(f"ds_read_b64_tr_b16 a[{w+2}:{w+3}], v{vr} offset:{o + 4*rp}")
        xr = []
        for tb in range(NTB):
            x = xfrag(st, tb)
            xr.append(f"ds_read_b128 a[{x}:{x+3}], v{V_XRD+ks4} offset:{(s%2)*XSLOT + tb*4096}")
        out = [xr[0]] + wr + xr[1:]
        return out
    def mfma(i, tb, b):
        st = i % 2; r = acc(tb, b)
        c = "0" if i == 0 else f"v[{r}:{r+15}]"
        w = wfrag(st, b); x = xfrag(st, tb)
        return f"v_mfma_f32_32x32x16_bf16 v[{r}:{r+15}], a[{w}:{w+3}], a[{x}:{x+3}], {c}"

    TA, TB = V_T, V_T + 12
    for j in range(NTOK):
        for x in jit(0, j, TA if j % 2 == 0 else TB): a(x)
    a(vm.wait("W0") + " lgkmcnt(0)")
    a("s_barrier")
    stamp(a, 3, 1, diag=diag)
    for x in reads(0): a(x)
    for x in jit(1, 0, TB): a(x)
    pend_w = 1
    for i in range(38):
        fill = {}
        fill[-1] = [f"s_waitcnt lgkmcnt({pend_w})"]
        mf = [mfma(i, tb, b) for tb in range(NTB) for b in range(NB)]
        odd = i % 2 == 1
        g0 = 0
        if odd:
            t = (i + 1) // 2
            fill.setdefault(0, []).append(vm.wait(f"W{t}") + " lgkmcnt(0)")
            fill[0].append("s_barrier")
            g0 = 1
        rd = reads(i + 1)
        spread(fill, rd, g0, g0 + len(rd) // 2 - (0 if len(rd) % 2 else 1))
        s = (i + 1) // 4 + 1; j = (i + 1) % 4
        jo = []
        pend_w = 0
        if s < 10:
            jo = jit(s, j, TA); pend_w = 1
            if not F and j == 1:
                jo += jit(s, 4, TB); pend_w = 2
            spread(fill, jo, 0 if not odd else 1, NM - 2)
        if odd:
            t = (i + 1) // 2
            if t - 1 + NSLOT < 20:
                spread(fill, wdma(t - 1 + NSLOT), NM // 2, NM - 1)
        seq = place(mf, fill)
        txt = "\n".join(seq)
        lr = txt.rfind("ds_read"); fw = txt.find("ds_write")
        if fw != -1 and fw < lr:
            tail = txt[lr:]
            pend_w = tail.count("ds_write")
        for x in seq:
            if "nodma" in EXP and "lds" in x and "buffer_load" in x: x = "s_nop 0"
            if "nodma" in EXP and "vmcnt" in x: x = "s_waitcnt lgkmcnt(0)"
            if "nobar" in EXP and x == "s_barrier": continue
            if "nojit" in EXP and (x.startswith("v_") and not x.startswith("v_mfma") or x.startswith("ds_write")): continue
            if "noreads" in EXP and x.startswith("ds_read"): continue
            if "notr" in EXP and x.startswith("ds_read_b64_tr"): continue
            if "nox" in EXP and x.startswith("ds_read_b128"): continue
            a(x)
    a(f"s_waitcnt lgkmcnt(0)")
    rd = reads(39)
    return dict(a=a, vm=vm, acc=acc, mfma=mfma, rd39=rd, NTB=NTB, NB=NB, V_T=V_T, V_LANE=V_LANE, V_ST=V_ST, V_A0=V_A0, V_A1=V_A1, ACC=ACC)

def epilogue_F(a, c, diag):
    acc, mfma, V_T, V_LANE, V_ST = c["acc"], c["mfma"], c["V_T"], c["V_LANE"], c["V_ST"]
    t0, t1 = V_T + 20, V_T + 21
    pre = f"""v_bfe_u32 v{t0}, v{V_LANE}, 4, 1
    v_lshlrev_b32 v{t0}, 10, v{t0}
    v_lshrrev_b32 v{t1}, 5, v{V_LANE}
    v_lshl_add_u32 v{t0}, v{t1}, 8, v{t0}
    v_and_b32 v{t1}, 15, v{V_LANE}
    v_lshl_add_u32 v{V_ST}, v{t1}, 4, v{t0}""".split("\n")
    pre += f"""s_mul_i32 s{S_T0}, s{S_CG}, 12
    s_mul_i32 s{S_T1}, s{S_WAVE}, 3
    s_add_u32 s{S_T0}, s{S_T0}, s{S_T1}
    s_mul_i32 s{S_T2}, s{S_RB}, {2*ACT_RG}
    s_add_u32 s{S_T2}, s{S_T2}, {20*4096}""".split("\n")
    for b in range(3):
        pre += f"""s_add_u32 s{S_T1}, s{S_T0}, {b}
        s_lshr_b32 s{S_ST+b}, s{S_T1}, 1
        s_lshl_b32 s{S_ST+b}, s{S_ST+b}, 12
        s_and_b32 s{S_T1}, s{S_T1}, 1
        s_lshl_b32 s{S_T1}, s{S_T1}, 9
        s_add_u32 s{S_ST+b}, s{S_ST+b}, s{S_T1}
        s_add_u32 s{S_ST+b}, s{S_ST+b}, s{S_T2}
        s_add_u32 s{S_ST+3+b}, s{S_ST+b}, {ACT_RG}""".split("\n")
    def epi(tb, b, tmp):
        r = acc(tb, b); out = []
        for q in range(8): out.append(f"v_max_f32 v{r+q}, 0, v{r+q}")
        for q in range(0, 8, 2): out.append(f"v_pk_mul_f32 v[{r+q}:{r+q+1}], v[{r+q}:{r+q+1}], v[{r+8+q}:{r+9+q}]")
        for q in range(4): out.append(f"v_cvt_pk_bf16_f32 v{tmp+q}, v{r+2*q}, v{r+2*q+1}")
        so = S_ST + b + (3 if tb >= 2 else 0)
        out.append(f"buffer_store_dwordx4 v[{tmp}:{tmp+3}], v{V_ST}, s[{S_WS}:{S_WS+3}], s{so} offen offset:{(tb&1)*2048}")
        return out
    order = [(tb, b) for tb in range(4) for b in range(3)]
    mf = []
    first = order[:4]
    seq = []
    for n, (tb, b) in enumerate(first): seq.append(mfma(38, tb, b))
    fill = {}
    spread(fill, c["rd39"], 0, 2)
    spread(fill, pre, 0, 3)
    for x in place(seq, fill): a(x)
    a("s_waitcnt lgkmcnt(0)")
    ml = []
    for n, (tb, b) in enumerate(order):
        if n >= 4: ml.append((mfma(38, tb, b), None))
        ml.append((mfma(39, tb, b), n))
    pending = []
    done_at = {}
    ops = []
    for idx, (m, fin) in enumerate(ml):
        a(m)
        if fin is not None: done_at[fin] = idx
        for n in list(done_at):
            if idx - done_at[n] >= 3:
                tb, b = order[n]; ops += epi(tb, b, V_T + 4 * (n % 4)); del done_at[n]
        k = 0
        while ops and k < 6:
            a(ops.pop(0)); k += 1
        if k < 4: a(f"s_nop {3-k}")
    a("s_nop 15")
    for n in sorted(done_at):
        tb, b = order[n]; ops += epi(tb, b, V_T + 4 * (n % 4))
    for o in ops: a(o)

ATT_BASE = 73728
KVB = 144 * 80
QB = 144 * 48
def epilogue_A(a, c, diag):
    acc, mfma, V_T, V_LANE, V_ST, V_A0, V_A1, ACC = c["acc"], c["mfma"], c["V_T"], c["V_LANE"], c["V_ST"], c["V_A0"], c["V_A1"], c["ACC"]
    t0, t1, t2 = V_T + 20, V_T + 21, V_T + 22
    pre = f"""v_and_b32 v{t0}, 31, v{V_LANE}
    v_subrev_u32 v{t0}, 16, v{t0}
    v_ashrrev_i32 v{t1}, 2, v{t0}
    v_lshlrev_b32 v{t1}, 1, v{t1}
    v_and_b32 v{t2}, 1, v{t0}
    v_add_u32 v{t1}, v{t1}, v{t2}
    v_bfe_u32 v{t2}, v{t0}, 1, 1
    v_mul_u32_u24 v{t2}, 72, v{t2}
    v_add_u32 v{t1}, v{t1}, v{t2}
    v_add_u32 v{t1}, 8, v{t1}
    s_mul_i32 s{S_T0}, s{S_WAVE}, {KVB+QB}
    s_add_u32 s{S_T0}, s{S_T0}, {ATT_BASE}
    s_sub_u32 s{S_T1}, s{S_T0}, {8*80}
    s_add_u32 s{S_T2}, s{S_T0}, {KVB - 8*48}
    v_lshrrev_b32 v{t2}, 5, v{V_LANE}
    v_lshlrev_b32 v{t2}, 3, v{t2}
    v_mul_u32_u24 v{t0}, 80, v{t1}
    v_add3_u32 v{V_A0}, v{t0}, v{t2}, s{S_T1}
    v_mul_u32_u24 v{t0}, 48, v{t1}
    v_add3_u32 v{V_A1}, v{t0}, v{t2}, s{S_T2}""".split("\n")
    def epi(tb, b, tmp):
        r = acc(tb, b); out = []
        for g in range(4):
            Qd = 8 * b + 2 * g
            if tb == 0 and Qd >= 10: continue
            out.append(f"v_cvt_pk_bf16_f32 v{tmp+2*g}, v{r+4*g}, v{r+4*g+1}")
            out.append(f"v_cvt_pk_bf16_f32 v{tmp+2*g+1}, v{r+4*g+2}, v{r+4*g+3}")
        if tb == 0: out.append(f"s_mov_b32 exec_lo, 0xffff0000\ns_mov_b32 exec_hi, 0xffff0000")
        for g in range(4):
            Qd = 8 * b + 2 * g
            if tb == 0 and Qd >= 10: continue
            if Qd < 10: out.append(f"ds_write_b64 v{V_A0}, v[{tmp+2*g}:{tmp+2*g+1}] offset:{tb*16*80 + 8*Qd}")
            else: out.append(f"ds_write_b64 v{V_A1}, v[{tmp+2*g}:{tmp+2*g+1}] offset:{tb*16*48 + 8*(Qd-10)}")
        if tb == 0: out.append("s_mov_b64 exec, -1")
        return out
    order = [(tb, b) for tb in (1, 2, 3, 4, 0) for b in range(2)]
    first = order[:4]
    seq = [mfma(38, tb, b) for (tb, b) in first]
    fill = {}
    spread(fill, c["rd39"], 0, 2)
    spread(fill, pre, 0, 3)
    for x in place(seq, fill): a(x)
    a("s_waitcnt lgkmcnt(0)")
    ml = []
    for n, (tb, b) in enumerate(order):
        if n >= 4: ml.append((mfma(38, tb, b), None))
        ml.append((mfma(39, tb, b), n))
    done_at = {}; ops = []
    for idx, (m, fin) in enumerate(ml):
        a(m)
        if fin is not None: done_at[fin] = idx
        for n in list(done_at):
            if idx - done_at[n] >= 3 and order[n][0] != 0:
                tb, b = order[n]; ops += epi(tb, b, V_T + 8 * (n % 2)); del done_at[n]
        k = 0
        while ops and k < 6:
            a(ops.pop(0)); k += 1
        if k < 4: a(f"s_nop {3-k}")
    a("s_nop 15")
    for n in sorted(done_at):
        tb, b = order[n]; ops += epi(tb, b, V_T + 8 * (n % 2))
    for o in ops: a(o)
    stamp(a, 4, 1, diag=diag)
    KV = 64
    Q = 36
    a(f"""
    v_mul_u32_u24 v{V_A0}, 80, v{V_LANE}
    v_add_u32 v{V_A0}, s{S_T0}, v{V_A0}
    v_mul_u32_u24 v{V_A1}, 48, v{V_LANE}
    v_add_u32 v{V_A1}, s{S_T0}, v{V_A1}
    s_waitcnt lgkmcnt(0)
    """)
    for tk in range(2):
        o = KVB + (tk * 72 + 8) * 48
        for cch in range(3):
            r = Q + 12 * tk + 4 * cch
            a(f"ds_read_b128 v[{r}:{r+3}], v{V_A1} offset:{o + 16*cch}")
    def kvrow(i): return ((1 if i % 2 == 0 else 0) * 72 + 8 - 2 * (i >> 1)) * 80
    for i in range(9):
        for cch in range(3):
            r = KV + 20 * i + 4 * cch
            a(f"ds_read_b128 v[{r}:{r+3}], v{V_A0} offset:{kvrow(i) + 16*cch}")
            if i == 2 and cch == 2: pass
    LG = 2
    a("s_waitcnt lgkmcnt(15)")
    def logits(i):
        out = []
        for tk, m in ((0, i - 1), (1, i)):
            if 0 <= m < 8:
                d = LG + 8 * tk + m
                for q in range(10):
                    if q == 0: out.append(f"v_dot2_f32_bf16 v{d}, v{Q+12*tk}, v{KV+20*i}, 0")
                    else: out.append(f"v_dot2_f32_bf16 v{d}, v{Q+12*tk+q}, v{KV+20*i+q}, v{d}")
        return out
    def inter(l1, l2):
        o = []
        for k in range(max(len(l1), len(l2))):
            if k < len(l1): o.append(l1[k])
            if k < len(l2): o.append(l2[k])
        return o
    vreads = []
    for i in range(9):
        for cch in range(3, 5):
            r = KV + 20 * i + 4 * cch
            vreads.append(f"ds_read_b128 v[{r}:{r+3}], v{V_A0} offset:{kvrow(i) + 16*cch}")
    for x in inter(logits(0) + logits(2), logits(1) + logits(3)): a(x)
    a("s_waitcnt lgkmcnt(0)")
    lg = inter(logits(4) + logits(6) + logits(8), logits(5) + logits(7))
    for k, x in enumerate(lg):
        a(x)
        if k % 4 == 0 and vreads: a(vreads.pop(0))
    for x in vreads: a(x)
    a(f"s_cmp_lg_u32 s{S_RB}, 0\ns_cbranch_scc1 L1A_nomask")
    a(f"""
    v_lshrrev_b32 v18, 1, v{V_LANE}
    v_lshlrev_b32 v18, 2, v18
    v_and_b32 v19, 1, v{V_LANE}
    v_add_u32 v18, v18, v19
    v_mov_b32 v19, 0xf149f2ca
    """)
    for m in range(1, 8):
        a(f"v_cmp_gt_u32 vcc, {2*m}, v18\ns_nop 1\nv_cndmask_b32 v{LG+m}, v{LG+m}, v19, vcc")
        if m < 7: a(f"v_cndmask_b32 v{LG+8+m+1}, v{LG+8+m+1}, v19, vcc")
    a.label("L1A_nomask")
    a("s_nop 2")
    import math, struct
    cst = (20 ** -0.5) * math.log2(math.e)
    cbits = struct.unpack("<I", struct.pack("<f", cst))[0]
    a(f"s_mov_b32 s{S_T1}, {cbits:#x}")
    for tk in range(2):
        b = LG + 8 * tk
        a(f"v_max3_f32 v{18+tk}, v{b}, v{b+1}, v{b+2}")
    for tk in range(2):
        b = LG + 8 * tk
        a(f"v_max3_f32 v{18+tk}, v{18+tk}, v{b+3}, v{b+4}")
    for tk in range(2):
        b = LG + 8 * tk
        a(f"v_max3_f32 v{18+tk}, v{18+tk}, v{b+5}, v{b+6}")
    for tk in range(2):
        b = LG + 8 * tk
        a(f"v_max_f32 v{18+tk}, v{18+tk}, v{b+7}")
    for tk in range(2): a(f"v_mul_f32 v{18+tk}, s{S_T1}, v{18+tk}")
    for tk in range(2):
        for m in range(8): a(f"v_fma_f32 v{LG+8*tk+m}, v{LG+8*tk+m}, s{S_T1}, -v{18+tk}")
    for q in range(16): a(f"v_exp_f32 v{LG+q}, v{LG+q}")
    a("s_nop 0")
    for tk in range(2):
        b = LG + 8 * tk
        a(f"v_pk_add_f32 v[{20+4*tk}:{21+4*tk}], v[{b}:{b+1}], v[{b+2}:{b+3}]")
        a(f"v_pk_add_f32 v[{22+4*tk}:{23+4*tk}], v[{b+4}:{b+5}], v[{b+6}:{b+7}]")
    for tk in range(2): a(f"v_pk_add_f32 v[{20+4*tk}:{21+4*tk}], v[{20+4*tk}:{21+4*tk}], v[{22+4*tk}:{23+4*tk}]")
    for tk in range(2): a(f"v_add_f32 v{18+tk}, v{20+4*tk}, v{21+4*tk}")
    for tk in range(2): a(f"v_rcp_f32 v{18+tk}, v{18+tk}")
    a("s_nop 0")
    for tk in range(2):
        for m in range(8): a(f"v_mul_f32 v{LG+8*tk+m}, v{LG+8*tk+m}, v{18+tk}")
    a("s_waitcnt lgkmcnt(0)")
    OA, OB = 20, 40
    U = 244
    for i in range(9):
        for half in range(2):
            n = 5
            for q in range(n):
                src = KV + 20 * i + 10 + half * 5 + q
                a(f"v_lshlrev_b32 v{U+2*q}, 16, v{src}")
                a(f"v_and_b32 v{U+2*q+1}, s{S_MASK}, v{src}")
            for tk, m in ((0, i - 1), (1, i)):
                if 0 <= m < 8:
                    p = LG + 8 * tk + m
                    pp = p & ~1; sel = p & 1
                    for q in range(n):
                        o = (OA if tk == 0 else OB) + half * 10 + 2 * q
                        if m == 0:
                            a(f"v_pk_mul_f32 v[{o}:{o+1}], v[{U+2*q}:{U+2*q+1}], v[{pp}:{pp+1}] op_sel:[0,{sel}] op_sel_hi:[1,{sel}]")
                        else:
                            a(f"v_pk_fma_f32 v[{o}:{o+1}], v[{U+2*q}:{U+2*q+1}], v[{pp}:{pp+1}], v[{o}:{o+1}] op_sel:[0,{sel},0] op_sel_hi:[1,{sel},1]")
    PK = 64
    for tk in range(2):
        for q in range(10):
            o = (OA if tk == 0 else OB) + 2 * q
            a(f"v_cvt_pk_bf16_f32 v{PK+10*tk+q}, v{o}, v{o+1}")
    a(f"""
    v_lshrrev_b32 v2, 1, v{V_LANE}
    v_lshlrev_b32 v2, 2, v2
    v_and_b32 v3, 1, v{V_LANE}
    v_add_u32 v2, v2, v3
    v_lshrrev_b32 v3, 6, v2
    s_mov_b32 s{S_T1}, {ACT_RG}
    v_mul_lo_u32 v3, v3, s{S_T1}
    v_bfe_u32 v4, v2, 4, 2
    v_lshl_add_u32 v3, v4, 10, v3
    v_and_b32 v4, 15, v2
    v_lshl_add_u32 v{V_ST}, v4, 4, v3
    s_mul_i32 s{S_T2}, s{S_RB}, {2*ACT_RG}
    s_mul_i32 s{S_T0}, s{S_CG}, 10
    s_lshr_b32 s{S_T1}, s{S_WAVE}, 1
    s_mul_i32 s{S_T1}, s{S_T1}, 5
    s_add_u32 s{S_T0}, s{S_T0}, s{S_T1}
    s_and_b32 s{S_T1}, s{S_WAVE}, 1
    s_lshl_b32 s{S_T1}, s{S_T1}, 1
    s_add_u32 s{S_T0}, s{S_T0}, s{S_T1}
    """)
    for k in range(3):
        a(f"""
        s_add_u32 s{S_T1}, s{S_T0}, {k}
        s_lshr_b32 s{S_ST+k}, s{S_T1}, 2
        s_lshl_b32 s{S_ST+k}, s{S_ST+k}, 12
        s_and_b32 s{S_T1}, s{S_T1}, 3
        s_lshl_b32 s{S_T1}, s{S_T1}, 8
        s_add_u32 s{S_ST+k}, s{S_ST+k}, s{S_T1}
        s_add_u32 s{S_ST+k}, s{S_ST+k}, s{S_T2}
        """)
    a(f"s_bitcmp1_b32 s{S_WAVE}, 0\ns_cbranch_scc1 L1A_odd")
    W = f"s[{S_WS}:{S_WS+3}]"
    for tk in range(2):
        p = PK + 10 * tk
        a(f"buffer_store_dwordx4 v[{p}:{p+3}], v{V_ST}, {W}, s{S_ST} offen offset:{32*tk}")
        a(f"buffer_store_dwordx4 v[{p+4}:{p+7}], v{V_ST}, {W}, s{S_ST+1} offen offset:{32*tk}")
        a(f"buffer_store_dwordx2 v[{p+8}:{p+9}], v{V_ST}, {W}, s{S_ST+2} offen offset:{32*tk}")
    a("s_branch L1A_fin")
    a.label("L1A_odd")
    for tk in range(2):
        p = PK + 10 * tk
        a(f"buffer_store_dwordx2 v[{p}:{p+1}], v{V_ST}, {W}, s{S_ST} offen offset:{32*tk+8}")
        a(f"buffer_store_dwordx4 v[{p+2}:{p+5}], v{V_ST}, {W}, s{S_ST+1} offen offset:{32*tk}")
        a(f"buffer_store_dwordx4 v[{p+6}:{p+9}], v{V_ST}, {W}, s{S_ST+2} offen offset:{32*tk}")
    a.label("L1A_fin")

def gen_k1(diag=False, rot=True):
    a = Asm()
    stamp(a, 0, 1, diag=diag)
    a(f"""
    s_cmp_ge_u32 s2, 256
    s_cbranch_scc1 L1_done
    s_load_dwordx16 s[64:79], s[0:1], 0
    s_load_dwordx4 s[80:83], s[0:1], 64
    v_lshrrev_b32 v2, 6, v0
    v_and_b32 v1, 63, v0
    s_and_b32 s{S_T0}, s2, 7              ; xcd
    v_readfirstlane_b32 s{S_WAVE}, v2
    s_lshr_b32 s{S_T1}, s2, 3             ; idx
    s_and_b32 s{S_RB}, s{S_T0}, 1
    s_lshl_b32 s{S_RB}, s{S_RB}, 3
    s_and_b32 s{S_T2}, s{S_T1}, 7         ; rb'
    s_add_u32 s{S_RB}, s{S_RB}, s{S_T2}
    s_lshr_b32 s{S_T1}, s{S_T1}, 3        ; c' 0..3
    s_lshr_b32 s{S_CG}, s{S_T0}, 1
    s_lshl_b32 s{S_CG}, s{S_CG}, 1
    s_and_b32 s{S_T0}, s{S_T1}, 1
    s_add_u32 s{S_CG}, s{S_CG}, s{S_T0}
    s_mul_i32 s{S_RHO}, s{S_T2}, 5
    s_mul_i32 s{S_T0}, s{S_T1}, 10
    s_add_u32 s{S_RHO}, s{S_RHO}, s{S_T0}
    s_lshr_b32 s{S_RHO}, s{S_RHO}, 2
    s_cmp_ge_u32 s{S_RHO}, 10
    s_cselect_b32 s{S_T0}, 10, 0
    s_sub_u32 s{S_RHO}, s{S_RHO}, s{S_T0}
    """)
    if not rot: a(f"s_mov_b32 s{S_RHO}, 0")
    a(f"s_cmp_lt_u32 s{S_T1}, 2\ns_cbranch_scc1 L1A")
    c = gen_type(a, 'F', diag)
    epilogue_F(a, c, diag)
    stamp(a, 4, 1, diag=diag); stamp(a, 5, 1, diag=diag)
    stamp_flush(a, 6, 1, S_WS, S_WAVE, 2, diag=diag)
    a("s_endpgm")
    a.label("L1A")
    c = gen_type(a, 'A', diag)
    epilogue_A(a, c, diag)
    stamp(a, 5, 1, diag=diag)
    stamp_flush(a, 6, 1, S_WS, S_WAVE, 2, diag=diag)
    a.label("L1_done")
    a("s_endpgm")
    return dict(name="k1_kernel", body=a.text(), vgpr=512, sgpr=102, accum=256, grid=256, block=256, lds=163840)

if __name__ == "__main__":
    from gen import gen_k0, gen_k2
    diag = "--diag" in sys.argv
    if "--cyc" in sys.argv: diag = "cyc"
    out = sys.argv[1]
    for f in sys.argv:
        if f.startswith("--x-"): EXP.add(f[4:])
    open(out, "w").write(make_file([gen_k0(diag), gen_k1(diag, rot="--norot" not in sys.argv), gen_k2(diag)]))
```
